```python
import torch

def _softmax(x, axis=-1):
    return torch.softmax(x, dim=axis)
def _gelu(x):
    return torch.nn.functional.gelu(x, approximate="tanh")
def _silu(x):
    return torch.nn.functional.silu(x)
def _sigmoid(x):
    return torch.sigmoid(x)
def _layernorm(x, axis=-1, eps=1e-5):
    m = x.mean(dim=axis, keepdim=True)
    v = x.var(dim=axis, keepdim=True, unbiased=False)
    return (x - m) / torch.sqrt(v + eps)
def _scatter_add(tgt, idx, src, axis=0):
    return tgt.clone().index_add_(axis, idx, src)
def _segment_sum(src, seg, n):
    out = torch.zeros((n,) + src.shape[1:], dtype=src.dtype)
    return out.index_add_(0, seg, src)
def _pad(x, pw):
    flat = tuple(v for pair in reversed(pw) for v in pair)
    return torch.nn.functional.pad(x, flat)

kernel_name = 'interleave_layers__sliding_block__moe_arch_mod__prompt'

def setup_inputs():

    _w = (lambda a: (lambda t: t.to(torch.bfloat16) if t.is_floating_point() else t)(torch.as_tensor(a)))
    def _A_setup():
        B, S, D = 1, 2048, 1024
        return {
            "x": _w((lambda *s: torch.randn(*s, dtype=torch.bfloat16) * 0.05)(B, S, D)),
            "wqkv": _w((lambda *s: torch.randn(*s, dtype=torch.bfloat16) * 0.05)(D, 3 * D)),
            "wo": _w((lambda *s: torch.randn(*s, dtype=torch.bfloat16) * 0.05)(D, D)),
        }
    _A_in = _A_setup()

    def _B_setup():
        B, S, D, F, C = 1, 2048, 1024, 3584, 1
        return {
            "x": _w((lambda *s: torch.randn(*s, dtype=torch.bfloat16) * 0.05)(B, S, D)),
            "w_r": _w((lambda *s: torch.randn(*s, dtype=torch.bfloat16) * 1.6)(D)),
            "w_gate": _w((lambda *s: torch.randn(*s, dtype=torch.bfloat16) * 0.1)(D, F)),
            "w_up": _w((lambda *s: torch.randn(*s, dtype=torch.bfloat16) * 0.1)(D, F)),
            "w_down": _w((lambda *s: torch.randn(*s, dtype=torch.bfloat16) * 0.1)(F, D)),
        }
    _B_in = _B_setup()

    return {
        "A_x": _A_in["x"],
        "A_wqkv": _A_in["wqkv"],
        "A_wo": _A_in["wo"],
        "B_x": _B_in["x"],
        "B_w_r": _B_in["w_r"],
        "B_w_gate": _B_in["w_gate"],
        "B_w_up": _B_in["w_up"],
        "B_w_down": _B_in["w_down"],
    }

def reference(A_x, A_wqkv, A_wo, B_x, B_w_r, B_w_gate, B_w_up, B_w_down):
    def _A_ref(x, wqkv, wo):
        B, S, D = x.shape
        H = 32; Dh = D // H; W = 256
        qkv = (lambda x, *d: x.permute(*d))((x @ wqkv).reshape(B, S, 3, H, Dh), 2, 0, 3, 1, 4)
        q, k, v = qkv[0], qkv[1], qkv[2]
        scores = torch.einsum("bhqd,bhkd->bhqk", q, k) * (Dh ** -0.5)
        idx = torch.arange(S)
        mask = (idx[:, None] - idx[None, :] >= 0) & (idx[:, None] - idx[None, :] < W)
        scores = torch.where(mask[None, None], scores, -1e9)
        p = _softmax(scores, axis=-1)
        o = torch.einsum("bhqk,bhkd->bhqd", p, v)
        return (lambda x, *d: x.permute(*d))(o, 0, 2, 1, 3).reshape(B, S, D) @ wo

    def _B_ref(x, w_r, w_gate, w_up, w_down):
        B, S, D = x.shape
        C = 1
        r = x @ w_r
        idx = torch.argsort(-r, axis=-1)[:, :C]
        idx_e = (lambda x, n, axis: torch.repeat_interleave(x, n, dim=axis))(idx.reshape(B, C, 1), D, axis=2)
        x_sel = (lambda x, i, axis: torch.take_along_dim(x, i, dim=axis))(x, idx_e, axis=1)
        g = _silu(x_sel @ w_gate)
        u = x_sel @ w_up
        y = (g * u) @ w_down
        r_sel = _sigmoid((lambda x, i, axis: torch.take_along_dim(x, i, dim=axis))(r, idx, axis=1))
        y = y * r_sel.reshape(B, C, 1)
        b_off = (torch.arange(B) * S).reshape(B, 1)
        flat_idx = (idx + b_off).reshape(B * C)
        zero = (x * 0.0).reshape(B * S, D)
        upd = _scatter_add(zero, flat_idx, y.reshape(B * C, D), axis=0)
        return x + upd.reshape(B, S, D)

    x = A_x
    x = x + _A_ref(_layernorm(x, axis=-1), A_wqkv, A_wo)
    x = x + _B_ref(_layernorm(x, axis=-1), B_w_r, B_w_gate, B_w_up, B_w_down)
    x = x + _A_ref(_layernorm(x, axis=-1), A_wqkv, A_wo)
    x = x + _B_ref(_layernorm(x, axis=-1), B_w_r, B_w_gate, B_w_up, B_w_down)
    return x
```

```python
class Asm:
    def __init__(self):
        self.lines = []
        self.nlabel = 0
    def __call__(self, s=''):
        for l in s.split('\n'):
            self.lines.append(l)
    def label(self, prefix='L'):
        self.nlabel += 1
        return '%s_%d' % (prefix, self.nlabel)
    def text(self):
        return '\n'.join(self.lines) + '\n'

def kernel_header(a, name):
    a('.text')
    a('.globl %s' % name)
    a('.p2align 8')
    a('.type %s,@function' % name)
    a('%s:' % name)

def kernel_desc(a, name, vgpr, sgpr=102, accum=None, kernarg=88):
    if accum is None:
        accum = min(256, (vgpr + 3) // 4 * 4)
    a('.section .rodata,"a"')
    a('.p2align 6')
    a('.amdhsa_kernel %s' % name)
    a('  .amdhsa_next_free_vgpr %d' % vgpr)
    a('  .amdhsa_next_free_sgpr %d' % sgpr)
    a('  .amdhsa_accum_offset %d' % accum)
    a('  .amdhsa_group_segment_fixed_size 0')
    a('  .amdhsa_kernarg_size %d' % kernarg)
    a('  .amdhsa_user_sgpr_count 2')
    a('  .amdhsa_user_sgpr_kernarg_segment_ptr 1')
    a('  .amdhsa_system_sgpr_workgroup_id_x 1')
    a('  .amdhsa_float_denorm_mode_32 3')
    a('.end_amdhsa_kernel')

def srd(a, d, base, nbytes):
    a('s_mov_b32 s%d, s%d' % (d, base))
    a('s_mov_b32 s%d, s%d' % (d + 1, base + 1))
    a('s_mov_b32 s%d, 0x%x' % (d + 2, nbytes))
    a('s_mov_b32 s%d, 0x00020000' % (d + 3))
```

```python
import sys
sys.path.insert(0, 'gen'); sys.path.insert(0, 'gen')
from asmlib import *

def gen(nwaves, nseg, ninstr, kind):
    a = Asm()
    name = 'mb_kernel'
    a('; @launch grid=(256,1,1) block=(%d,1,1) lds=0' % (nwaves * 64))
    a('.amdgcn_target "amdgcn-amd-amdhsa--gfx950"')
    kernel_header(a, name)
    a('s_cmp_ge_u32 s2, 256')
    a('s_cbranch_scc1 L_end')
    a('s_load_dwordx2 s[6:7], s[0:1], 8')
    a('s_waitcnt lgkmcnt(0)')
    srd(a, 12, 6, 1 << 20)
    a('v_lshrrev_b32 v1, 6, v0')
    a('v_and_b32 v2, 63, v0')
    a('s_nop 0')
    a('v_readfirstlane_b32 s20, v1')
    a('s_mov_b32 s21, 0')
    a('L_loop:')
    a('s_memtime s[30:31]')
    a('s_waitcnt lgkmcnt(0)')
    for s in range(nseg):
        for i in range(ninstr):
            if kind == 8:
                a('v_fma_f32 v%d, v4, v5, v6' % (8 + i % 8))
            else:
                a('v_add_f32 v%d, v4, v5' % (8 + i % 8))
        a('s_memtime s[32:33]')
        a('s_waitcnt lgkmcnt(0)')
        a('s_sub_u32 s%d, s32, s30' % (40 + s))
        a('s_mov_b32 s30, s32')
    a('s_mul_i32 s25, s2, %d' % nwaves)
    a('s_add_u32 s25, s25, s20')
    a('s_lshl_b32 s25, s25, 6')
    a('s_lshl_b32 s26, s21, 5')
    a('s_add_u32 s25, s25, s26')
    a('v_mov_b32 v1, s25')
    for q in range(2):
        for r in range(4):
            a('v_mov_b32 v%d, s%d' % (20 + r, 40 + q * 4 + r))
        a('buffer_store_dwordx4 v[20:23], v1, s[12:15], 0 offen offset:%d' % (q * 16))
        a('s_waitcnt vmcnt(0)')
    a('s_add_u32 s21, s21, 1')
    a('s_cmp_lt_u32 s21, 2')
    a('s_cbranch_scc1 L_loop')
    a('L_end:')
    a('s_endpgm')
    kernel_desc(a, name, 32, kernarg=16)
    return a.text()

configs = [(1, 8, 256, 8), (4, 8, 256, 8), (8, 8, 256, 8), (4, 8, 256, 4), (4, 8, 1024, 8)]

if __name__ == '__main__':
    sys.path.insert(0, 'bench')
    from runner import *
    os.makedirs('probe', exist_ok=True)
    inp = DeviceBuffer(1 << 20); out = DeviceBuffer(1 << 20); flush = DeviceBuffer(512 << 20)
    np.set_printoptions(linewidth=200, suppress=True)
    for i, c in enumerate(configs):
        p = 'mbi_%d.s' % i
        open(p, 'w').write(gen(*c))
        k, g, b, lds, _ = build(p, 'mb_kernel', 2)
        for mode in ('flush', 'noflush'):
            for rep in range(3):
                if mode.startswith('flush'):
                    memset(flush, rep)
                sync()
                k.launch(g, b, kernargs([inp, out]), lds); sync()
                t = out.to_numpy(np.uint32, (256 * c[0], 16)).astype(np.int64)
            print(c, mode, 'median', np.median(t, 0), 'max', t.max(0)[:8])
        k.unload()
```
